```python
import torch

def _softmax(x, axis=-1):
    return torch.softmax(x, dim=axis)
def _gelu(x):
    return torch.nn.functional.gelu(x, approximate="tanh")
def _silu(x):
    return torch.nn.functional.silu(x)
def _sigmoid(x):
    return torch.sigmoid(x)
def _layernorm(x, axis=-1, eps=1e-5):
    m = x.mean(dim=axis, keepdim=True)
    v = x.var(dim=axis, keepdim=True, unbiased=False)
    return (x - m) / torch.sqrt(v + eps)
def _scatter_add(tgt, idx, src, axis=0):
    return tgt.clone().index_add_(axis, idx, src)
def _segment_sum(src, seg, n):
    out = torch.zeros((n,) + src.shape[1:], dtype=src.dtype)
    return out.index_add_(0, seg, src)
def _pad(x, pw):
    flat = tuple(v for pair in reversed(pw) for v in pair)
    return torch.nn.functional.pad(x, flat)

kernel_name = 'standalone__mha_softmax__near_ridge'

def setup_inputs():

    _w = (lambda a: (lambda t: t.to(torch.bfloat16) if t.is_floating_point() else t)(torch.as_tensor(a)))
    B, H, Sq, Sk, D = 16, 32, 384, 512, 192
    return {
        "q": _w((lambda *s: torch.randn(*s, dtype=torch.bfloat16) * 0.8)(B, H, Sq, D)),
        "k": _w((lambda *s: torch.randn(*s, dtype=torch.bfloat16) * 0.8)(B, H, Sk, D)),
        "v": _w((lambda *s: torch.randn(*s, dtype=torch.bfloat16) * 0.05)(B, H, Sk, D)),
    }

def reference(q, k, v):
    scale = q.shape[-1] ** -0.5
    scores = torch.einsum("bhqd,bhkd->bhqk", q, k) * scale
    p = _softmax(scores, axis=-1)
    return torch.einsum("bhqk,bhkd->bhqd", p, v)
```

```python
import sys, functools

KN = 'standalone__mha_softmax__near_ridge_kernel'
SCALE_HEX = 0x3dd53b95

TILE = 12288
KB, VB = 0, 3 * TILE
QS = 6 * TILE
WREG = 22528
LDS = QS + 4 * WREG
assert LDS == 163840

NVT = 53
def Oreg(q, dt):
    o = q * 12 + dt
    return ('v', 4 * o) if o < NVT else ('a', 180 + 4 * (o - NVT))
def P(q): return 212 + 4 * q
NS = 4
def SB(k): return 236 + 4 * k
KADDR, VADDR, DMAOFF, QOFF = 252, 253, 254, 255
def Q(q, j): return 24 * q + 4 * j
def F(i): return 144 + 4 * i
L0, L1, SEL = 168, 172, 176
sQ, sK, sV, sO, sQS = 4, 8, 12, 16, 20
sC, sOFF, sMK, sD, sMKEND, sNEG, sQM, sQO, sQINC, sCNT, sHEAD, sBAD, sQOFF = 24, 25, 26, 27, 28, 29, 30, 31, 32, 33, 34, 35, 36
sQD = 37
sQMAX, s2816, sT0, sT1, sT2, sT3 = 40, 41, 42, 43, 44, 45
sW = 3

def rng(f, b, n): return '%s[%d:%d]' % (f, b, b + n - 1)

DTORDER = [0, 4, 8, 1, 5, 9, 3, 7, 11, 2, 6, 10]
JORD = [[0, 2, 4, 1, 3, 5], [1, 3, 5, 0, 2, 4]]

class Opt:
    ldf = 'nt'
    stf = 'sc1'
    stamps = False
    lag = 2

def schedule_valu(busy, ready, dead):
    G = len(busy)
    INF = 10 ** 9
    def cost(b, m, e, c):
        use = m + c + 2 * e
        cap = (2, 1, 0)[b]
        over = max(0, use - cap)
        return over
    opts = [(m, e, c) for m in range(0, 4) for e in range(0, 3) for c in range(0, 3) if m + c + 2 * e <= 5]
    from collections import defaultdict
    cur = {(0, 0, 0): (0, None)}
    hist = []
    for g in range(G):
        nxt = {}
        for (nm, ne, nc), (cs, _) in cur.items():
            for (m, e, c) in opts:
                if nm + m > 48 or ne + e > 48 or nc + c > 24: continue
                if m and ready[(nm + m - 1) // 4] > g: continue
                if ne + e > nm + m: continue
                if c and 2 * (nc + c) > ne: continue
                s2 = (nm + m, ne + e, nc + c)
                ok = True
                for u in range(s2[2] // 2, 12):
                    if dead[u] <= g: ok = False
                    break
                if not ok: continue
                c2 = cs + cost(busy[g], m, e, c) * 1000 + (m + e + c) * g * 0
                if s2 not in nxt or nxt[s2][0] > c2:
                    nxt[s2] = (c2, ((nm, ne, nc), (m, e, c)))
        items = sorted(nxt.items(), key=lambda kv: (kv[1][0], -sum(kv[0])))
        mn = items[0][1][0]
        keep = []
        for k, v in items:
            if v[0] > mn + 12000: break
            if any(k2[0] >= k[0] and k2[1] >= k[1] and k2[2] >= k[2] for k2, _ in keep): continue
            keep.append((k, v))
        nxt = dict(keep)
        hist.append(nxt)
        cur = nxt
    end = (48, 48, 24)
    assert end in cur
    total = cur[end][0] // 1000
    res = [None] * G
    s = end
    for g in range(G - 1, -1, -1):
        prev, (m, e, c) = hist[g][s][1]
        ops = [('c', prev[2] + i) for i in range(c)] + [('m', prev[0] + i) for i in range(m)] + [('e', prev[1] + i) for i in range(e)]
        res[g] = ops
        s = prev
    return res, total

@functools.lru_cache(None)
def steady_valu(lag):
    busy = [0] * 144
    for g in DS_GAPS: busy[g] = 1
    for g in XOR_GAPS: busy[g] = 2
    for g in DMA_GAPS: busy[g] = 2
    ready = [6 * c + 5 + lag for c in range(12)]
    dead = [1000] * 12
    need = {0: 72, 1: 73, 2: 84, 3: 90, 4: 96, 5: 102}
    for c in range(12):
        q = c % 6
        d = need[q] - 2
        if c >= 6 and c + NS < 12: d = min(d, 6 * (c + NS) - 1)
        dead[c] = d
    return schedule_valu(busy, ready, dead)

K1_GAPS = [30, 31, 32, 33, 34, 35]
VA_GAPS = list(range(66, 78))
VB_GAPS = list(range(102, 114))
K0_GAPS = [119, 120, 125, 131, 137, 143]
DS_GAPS = K1_GAPS + VA_GAPS + VB_GAPS + K0_GAPS
XOR_GAPS = [32, 71, 77, 107, 112, 113, 125]
DMA_GAPS = [122, 124, 127, 129, 133, 135, 139]
BAR_GAP = 118

class Gen:
    def __init__(self, opt):
        self.L = []
        self.opt = opt
        self.nst = 0
    def __call__(self, s):
        self.L.append(s)

    def step(self, first=False, vmw=None, bwait=7, qdirect=False, vbar=None, loop_label=None):
        o = self.opt
        vmw = dict(vmw or {})
        mf = [None] * 144
        need_ds = {}
        for s in range(2):
            for q in range(6):
                c = 6 * s + q
                d = P(q) if s == 0 else SB(q % NS)
                for i in range(6):
                    pos = 6 * c + i
                    j = JORD[s][i]
                    mf[pos] = 'v_mfma_f32_16x16x32_bf16 %s, %s, %s, %s' % (
                        rng('v', d, 4), rng('a', F(i), 4), rng('a', Q(q, j), 4), '0' if i == 0 else rng('v', d, 4))
                    if q == 0: need_ds[pos] = ('k', s, i)
        def pv(pos, gi, q):
            f, b = Oreg(q, DTORDER[gi])
            mf[pos] = 'v_mfma_f32_16x16x32_bf16 %s, %s, %s, %s' % (
                rng(f, b, 4), rng('a', F(gi % 6), 4), rng('v', P(q), 4), '0' if first else rng(f, b, 4))
        for gi in range(6):
            pv(72 + 2 * gi, gi, 0); pv(73 + 2 * gi, gi, 1)
            need_ds[72 + 2 * gi] = ('v', gi, 1)
            for q in range(2, 6): pv(84 + 6 * (q - 2) + gi, gi, q)
        for gi in range(6, 12):
            for q in range(6): pv(108 + 6 * (gi - 6) + q, gi, q)
            need_ds[108 + 6 * (gi - 6)] = ('v', gi, 1)
        A = {}; Bx = {}; tag = {}
        for i, g in enumerate(K1_GAPS):
            j = JORD[1][i]
            A[g] = 'ds_read_b128 %s, v%d offset:%d' % (rng('a', F(i), 4), KADDR, 6144 + (j >> 1) * 1024); tag[g] = ('k', 1, i)
        for i, g in enumerate(K0_GAPS):
            j = JORD[0][i]
            A[g] = 'ds_read_b128 %s, v%d offset:%d' % (rng('a', F(i), 4), KADDR, (j >> 1) * 1024); tag[g] = ('k', 0, i)
        for gi in range(12):
            for h in range(2):
                g = (VA_GAPS if gi < 6 else VB_GAPS)[2 * (gi % 6) + h]
                A[g] = 'ds_read_b64_tr_b16 %s, v%d offset:%d' % (rng('a', F(gi % 6) + 2 * h, 2), VADDR, h * 6144 + (DTORDER[gi] >> 2) * 1024)
                tag[g] = ('v', gi, h)
        Bx[32] = 'v_xor_b32 v%d, 64, v%d' % (KADDR, KADDR)
        Bx[125] = 'v_xor_b32 v%d, 64, v%d' % (KADDR, KADDR)
        Bx[112] = 'v_add_u32 v%d, s%d, v%d' % (KADDR, sD, KADDR)
        Bx[71] = 'v_xor_b32 v%d, 32, v%d' % (VADDR, VADDR)
        Bx[77] = 'v_xor_b32 v%d, 64, v%d' % (VADDR, VADDR)
        Bx[107] = 'v_xor_b32 v%d, 32, v%d' % (VADDR, VADDR)
        Bx[113] = 'v_xad_u32 v%d, v%d, 64, s%d' % (VADDR, VADDR, sD)
        sh = {}
        dma = [('s_mov_b32 m0, s%d' % sQM, 'buffer_load_dwordx4 v%d, %s, s%d offen %s lds' % (DMAOFF, rng('s', sQS, 4), sQO, o.ldf))]
        for srd, base in ((sK, 0), (sV, VB - KB)):
            for t in range(3):
                dma.append(('s_add_u32 m0, s%d, %d' % (sMK, base + 896 * t) if base + t else 's_mov_b32 m0, s%d' % sMK,
                            'buffer_load_dwordx4 v%d, %s, s%d offen offset:%d %s lds' % (DMAOFF, rng('s', srd, 4), sOFF, 128 * t, o.ldf)))
        for g, (m, ld) in zip(DMA_GAPS, dma):
            A[g] = ld; sh[g - 1] = m
        sh[BAR_GAP] = 's_barrier'
        if vbar is not None:
            sh[65] = 's_barrier'; vmw[64] = vbar
        sh[8] = 's_cmp_eq_u32 s%d, s%d' % (sMK, sMKEND)
        sh[9] = 's_cselect_b32 s%d, s%d, %d' % (sD, sNEG, TILE)
        sh[10] = 's_cselect_b32 s%d, s%d, 128' % (sQINC, s2816)
        sh[130] = 's_add_u32 s%d, s%d, 1024' % (sQM, sQM)
        sh[140] = 's_min_u32 s%d, s%d, s%d' % (sQM, sQM, sQMAX)
        order = [tag[g] for g in K0_GAPS] + [tag[g] for g in sorted(tag) if tag[g][0] == 'v' or tag[g][1] == 1]
        issue_gap = {tag[g]: (g - 144 if (tag[g][0] == 'k' and tag[g][1] == 0) else g) for g in tag}
        lg = {}
        done = -1
        for pos in sorted(list(need_ds) + [BAR_GAP]):
            if pos == BAR_GAP:
                lg[BAR_GAP - 1] = 0; done = len(order) - 1; continue
            k = order.index(need_ds[pos])
            if k <= done: continue
            wg = pos - 1
            issued = sum(1 for t in order if issue_gap[t] < wg or (wg == -1 and issue_gap[t] < 0))
            assert issued > k, (pos, k, issued)
            lg[wg] = issued - k - 1
            done = k
        vmw[BAR_GAP - 1] = bwait
        waits = {}
        for g in set(lg) | set(vmw):
            w = []
            if g in vmw: w.append('vmcnt(%d)' % vmw[g])
            if g in lg: w.append('lgkmcnt(%d)' % lg[g])
            waits[g] = 's_waitcnt ' + ' '.join(w)
        pre = {}
        if qdirect:
            for q in range(3, 6):
                for j in range(6):
                    pre.setdefault(6 * (6 + q) + 6 + j if q < 5 else 78 + j, []).append(
                        'buffer_load_dwordx4 %s, v%d, %s, s%d offen offset:%d %s' % (rng('a', Q(q, j), 4), QOFF, rng('s', sQ, 4), sQD + q - 3, 64 * j, o.ldf))
        valu, over = steady_valu(o.lag)
        def vop(kind, k):
            if kind == 'c':
                c = k // 2; s, q = divmod(c, 6)
                src = (P(q) if s == 0 else SB(q % NS)) + 2 * (k % 2)
                return 'v_cvt_pk_bf16_f32 v%d, v%d, v%d' % (P(q) + 2 * s + (k % 2), src, src + 1)
            c = k // 4; s, q = divmod(c, 6)
            r = (P(q) if s == 0 else SB(q % NS)) + (k % 4)
            return 'v_mul_f32 v%d, s%d, v%d' % (r, sC, r) if kind == 'm' else 'v_exp_f32 v%d, v%d' % (r, r)
        if -1 in waits: self(waits[-1])
        for g in range(144):
            self(mf[g])
            if g in waits:
                self(waits[g])
                if g in sh: self(sh[g])
            elif g in sh: self(sh[g])
            if g in A: self(A[g])
            for x in pre.get(g, []): self(x)
            if g in Bx: self(Bx[g])
            for kind, k in valu[g]: self(vop(kind, k))
        fill = ['s_add_u32 s%d, s%d, s%d' % (sMK, sMK, sD), 's_add_u32 s%d, s%d, %d' % (sOFF, sOFF, TILE),
                's_add_u32 s%d, s%d, s%d' % (sQO, sQO, sQINC),
                's_sub_u32 s%d, s%d, 1' % (sCNT, sCNT), 's_cmp_lg_u32 s%d, 0' % sCNT]
        n = 0
        for x in range(3):
            for h in range(2):
                for half, Lr in ((0, L0), (1, L1)):
                    q = 3 * half + x
                    cin = '0' if (first and x == 0 and h == 0) else rng('a', Lr, 4)
                    self('v_mfma_f32_4x4x4_16b_bf16 %s, %s, %s, %s cbsz:4 abid:%d' % (
                        rng('a', Lr, 4), rng('a', SEL, 2), rng('v', P(q) + 2 * h, 2), cin, x))
                if n < 5: self(fill[n])
                n += 1
        if loop_label: self('s_cbranch_scc1 %s' % loop_label)

    def lane(self, r):
        self('v_mbcnt_lo_u32_b32 v%d, -1, 0' % r)
        self('v_mbcnt_hi_u32_b32 v%d, -1, v%d' % (r, r))

    def kpat(self, d, l, t0, t1):
        self('v_lshrrev_b32 v%d, 4, v%d' % (t0, l))
        self('v_and_b32 v%d, 6, v%d' % (t1, l))
        self('v_xor_b32 v%d, v%d, v%d' % (t0, t0, t1))
        self('v_lshlrev_b32 v%d, 4, v%d' % (t0, t0))
        self('v_and_b32 v%d, 7, v%d' % (t1, l))
        self('v_lshl_add_u32 v%d, v%d, 7, v%d' % (t0, t1, t0))
        self('v_bfe_u32 v%d, v%d, 3, 1' % (t1, l))
        self('v_mul_u32_u24 v%d, 3072, v%d' % (t1, t1))
        self('v_add_u32 v%d, v%d, v%d' % (d, t0, t1))

    def vpat(self, d, l, t0, t1):
        self('v_bfe_u32 v%d, v%d, 2, 3' % (t0, l))
        self('v_and_b32 v%d, 6, v%d' % (t1, t0))
        self('v_lshlrev_b32 v%d, 4, v%d' % (t1, t1))
        self('v_lshl_add_u32 v%d, v%d, 7, v%d' % (t0, t0, t1))
        self('v_and_b32 v%d, 3, v%d' % (t1, l))
        self('v_lshl_add_u32 v%d, v%d, 3, v%d' % (t0, t1, t0))
        self('v_lshrrev_b32 v%d, 5, v%d' % (t1, l))
        self('v_mul_u32_u24 v%d, 3072, v%d' % (t1, t1))
        self('v_add_u32 v%d, v%d, v%d' % (d, t0, t1))

    def stamp(self, idx):
        if not self.opt.stamps: return
        self('s_memtime s[60:61]')
        self('s_memrealtime s[62:63]')
        self('s_waitcnt lgkmcnt(0)')
        self('s_mov_b32 s%d, s60' % (64 + 2 * idx))
        self('s_mov_b32 s%d, s62' % (65 + 2 * idx))

    def prologue(self):
        o = self.opt
        self('s_cmp_ge_u32 s2, 256')
        self('s_cbranch_scc1 L_end')
        self('s_load_dwordx4 s[44:47], s[0:1], 0')
        self('s_load_dwordx4 s[48:51], s[0:1], 16')
        if o.stamps: self('s_load_dwordx2 s[56:57], s[0:1], 40')
        self('v_lshrrev_b32 v1, 6, v0')
        self('v_and_b32 v0, 63, v0')
        self('v_readfirstlane_b32 s%d, v1' % sW)
        self('v_lshrrev_b32 v2, 3, v0')
        self('v_and_b32 v3, 6, v2')
        self('v_and_b32 v4, 7, v0')
        self('v_xor_b32 v3, v3, v4')
        self('v_lshlrev_b32 v3, 4, v3')
        self('v_mul_u32_u24 v2, 384, v2')
        self('v_add_u32 v%d, v2, v3' % DMAOFF)
        self('v_and_b32 v2, 15, v0')
        self('v_mul_u32_u24 v2, 384, v2')
        self('v_lshrrev_b32 v3, 4, v0')
        self('v_lshl_add_u32 v%d, v3, 4, v2' % QOFF)
        self('s_mul_i32 s%d, s2, 294912' % sT0)
        self('s_mul_i32 s%d, s2, 393216' % sT1)
        self('s_mul_i32 s%d, s%d, 36864' % (sQOFF, sW))
        self('s_mul_i32 s%d, s%d, 3072' % (sOFF, sW))
        self('s_waitcnt lgkmcnt(0)')
        self.stamp(0)
        for srd, p, off, n in ((sK, 46, sT1, 393216), (sQ, 44, sT0, 294912), (sV, 48, sT1, 393216), (sO, 50, sT0, 294912)):
            self('s_add_u32 s%d, s%d, s%d' % (srd, p, off))
            self('s_addc_u32 s%d, s%d, 0' % (srd + 1, p + 1))
            self('s_mov_b32 s%d, %d' % (srd + 2, n))
            self('s_mov_b32 s%d, 0x20000' % (srd + 3))
        self('s_add_u32 s%d, s%d, %d' % (sMK, sOFF, KB))
        def kv(srd, base, tile):
            for t in range(3):
                self('s_add_u32 m0, s%d, %d' % (sMK, base + tile * TILE + 896 * t))
                self('s_add_u32 s%d, s%d, %d' % (sT2, sOFF, tile * TILE))
                self('buffer_load_dwordx4 v%d, %s, s%d offen offset:%d %s lds' % (DMAOFF, rng('s', srd, 4), sT2, 128 * t, o.ldf))
        kv(sK, 0, 0)
        for q in range(6):
            self('s_add_u32 s%d, s%d, %d' % (sT2, sQOFF, q * 6144))
            for j in range(6):
                self('buffer_load_dwordx4 %s, v%d, %s, s%d offen offset:%d %s' % (rng('a', Q(q, j), 4), QOFF, rng('s', sQ, 4), sT2, 64 * j, o.ldf))
        kv(sV, VB - KB, 0)
        for t in (1, 2):
            kv(sK, 0, t); kv(sV, VB - KB, t)
        self('s_add_u32 s%d, s%d, 147456' % (sT2, sQOFF))
        self('s_add_u32 s%d, s%d, s%d' % (sQS, sQ, sT2))
        self('s_addc_u32 s%d, s%d, 0' % (sQS + 1, sQ + 1))
        self('s_mov_b32 s%d, 18432' % (sQS + 2))
        self('s_mov_b32 s%d, 0x20000' % (sQS + 3))
        self('s_mul_i32 s%d, s%d, %d' % (sQM, sW, WREG))
        self('s_add_u32 s%d, s%d, %d' % (sQM, sQM, QS))
        self('s_add_u32 s%d, s%d, 18432' % (sQMAX, sQM))
        for t in range(3):
            self('s_add_u32 m0, s%d, %d' % (sQM, 896 * t))
            self('s_nop 0')
            self('buffer_load_dwordx4 v%d, %s, 0 offen offset:%d %s lds' % (DMAOFF, rng('s', sQS, 4), 128 * t, o.ldf))
        self('s_add_u32 s%d, s%d, 3072' % (sQM, sQM))
        self('s_mov_b32 s%d, 3072' % sQO)
        for q in range(3):
            self('s_add_u32 s%d, s%d, %d' % (sQD + q, sQOFF, 147456 + (3 + q) * 6144))
        self('s_add_u32 s%d, s%d, %d' % (sOFF, sOFF, 3 * TILE))
        self('s_add_u32 s%d, s%d, %d' % (sMKEND, sMK, 2 * TILE))
        self('s_mov_b32 s%d, %d' % (sNEG, -2 * TILE))
        self('s_mov_b32 s%d, 2816' % s2816)
        self('s_mov_b32 s%d, 0x%x' % (sC, SCALE_HEX))
        self('s_mov_b32 s%d, 0' % sHEAD)
        self('s_mov_b32 s%d, 0' % sBAD)
        self.kpat(KADDR, 0, 2, 3)
        self.vpat(VADDR, 0, 2, 3)
        self('v_add_u32 v%d, %d, v%d' % (VADDR, VB, VADDR))
        self('v_lshrrev_b32 v2, 2, v0')
        self('v_and_b32 v3, 3, v0')
        self('v_cmp_eq_u32 vcc, v2, v3')
        self('v_mov_b32 v4, 0x3f803f80')
        self('s_nop 0')
        self('v_cndmask_b32 v4, 0, v4, vcc')
        self('v_accvgpr_write_b32 a%d, v4' % SEL)
        self('v_accvgpr_write_b32 a%d, v4' % (SEL + 1))
        self('s_waitcnt vmcnt(54)')
        self('s_barrier')
        for i in range(6):
            j = JORD[0][i]
            if i == 3: self('v_xor_b32 v%d, 64, v%d' % (KADDR, KADDR))
            self('ds_read_b128 %s, v%d offset:%d' % (rng('a', F(i), 4), KADDR, (j >> 1) * 1024))

    def epilogue(self):
        o = self.opt
        R0 = 212
        T = 218
        LN, OWX, OWY, ORD, T0, T1 = 236, 237, 238, 239, 240, 241
        self('s_waitcnt vmcnt(25)')
        self.lane(LN)
        self('s_cmp_lg_u32 s%d, 0' % sHEAD)
        self('s_cbranch_scc1 L_noq')
        self.kpat(T0, LN, T1, OWX)
        self('s_sub_u32 s%d, s%d, 18432' % (sT0, sQMAX))
        self('v_add_u32 v%d, s%d, v%d' % (T0, sT0, T0))
        self('v_xor_b32 v%d, 64, v%d' % (T1, T0))
        for q in range(3):
            for j in range(6):
                self('ds_read_b128 %s, v%d offset:%d' % (rng('a', Q(q, j), 4), T1 if j & 1 else T0, q * 6144 + (j >> 1) * 1024))
        self('L_noq:')
        for q in range(6):
            self('v_accvgpr_read_b32 v%d, a%d' % (R0 + q, (L0 if q < 3 else L1) + q % 3))
        for swap in ('v_permlane32_swap_b32', 'v_permlane16_swap_b32'):
            for q in range(6): self('v_mov_b32 v%d, v%d' % (T + q, R0 + q))
            for q in range(6): self('%s v%d, v%d' % (swap, T + q, R0 + q))
            for q in range(6): self('v_add_f32 v%d, v%d, v%d' % (R0 + q, T + q, R0 + q))
        self('v_min3_f32 v%d, v%d, v%d, v%d' % (T, R0, R0 + 1, R0 + 2))
        self('v_max3_f32 v%d, v%d, v%d, v%d' % (T + 1, R0, R0 + 1, R0 + 2))
        self('v_min3_f32 v%d, v%d, v%d, v%d' % (T, T, R0 + 3, R0 + 4))
        self('v_max3_f32 v%d, v%d, v%d, v%d' % (T + 1, T + 1, R0 + 3, R0 + 4))
        self('v_min_f32 v%d, v%d, v%d' % (T, T, R0 + 5))
        self('v_max_f32 v%d, v%d, v%d' % (T + 1, T + 1, R0 + 5))
        self('v_cmp_nle_f32 vcc, 0x33800000, v%d' % T)
        self('s_mov_b64 s[%d:%d], vcc' % (sT2, sT3))
        self('v_cmp_nge_f32 vcc, 0x57800000, v%d' % (T + 1))
        for q in range(6): self('v_rcp_f32 v%d, v%d' % (R0 + q, R0 + q))
        self('s_or_b64 vcc, vcc, s[%d:%d]' % (sT2, sT3))
        self('s_cselect_b32 s%d, 1, 0' % sT0)
        self('s_lshl_b32 s%d, s%d, s%d' % (sT0, sT0, sHEAD))
        self('s_or_b32 s%d, s%d, s%d' % (sBAD, sBAD, sT0))
        self('s_add_u32 s%d, s%d, 1024' % (sT1, sQMAX))
        self('v_bfe_u32 v%d, v%d, 4, 1' % (T0, LN))
        self('v_lshrrev_b32 v%d, 5, v%d' % (T1, LN))
        self('v_lshl_add_u32 v%d, v%d, 1, v%d' % (T0, T0, T1))
        self('v_and_b32 v%d, 7, v%d' % (T1, LN))
        self('v_xor_b32 v%d, v%d, v%d' % (T0, T0, T1))
        self('v_lshlrev_b32 v%d, 4, v%d' % (T0, T0))
        self('v_and_b32 v%d, 15, v%d' % (T1, LN))
        self('v_lshl_add_u32 v%d, v%d, 7, v%d' % (T0, T1, T0))
        self('v_add_u32 v%d, s%d, v%d' % (OWX, sT1, T0))
        self('v_xor_b32 v%d, 64, v%d' % (OWY, OWX))
        self('v_bfe_u32 v%d, v%d, 3, 1' % (T0, LN))
        self('v_xor_b32 v%d, v%d, v%d' % (T0, T0, LN))
        self('v_lshlrev_b32 v%d, 4, v%d' % (T0, T0))
        self('v_add_u32 v%d, s%d, v%d' % (ORD, sT1, T0))
        pend = None
        def stores(pd):
            un, R = pd
            q, t = divmod(un, 3)
            if t == 0: self('s_add_u32 s%d, s%d, %d' % (sT0, sQOFF, q * 6144))
            self('s_waitcnt lgkmcnt(0)')
            for h in range(2):
                self('buffer_store_dwordx4 %s, v%d, %s, s%d offen offset:%d %s' % (
                    rng('v', R + 4 + 8 * h, 4), DMAOFF, rng('s', sO, 4), sT0, 3072 * h + 128 * t, o.stf))
        for un in range(18):
            q, t = divmod(un, 3)
            R = 16 * un if un < 13 else 16 * (un - 13)
            if un >= 13:
                for k in range(4):
                    f, b = Oreg(q, 4 * t + k)
                    for r in range(4):
                        self(('v_accvgpr_read_b32 v%d, a%d' if f == 'a' else 'v_mov_b32 v%d, v%d') % (R + 4 * k + r, b + r))
            rp = R0 + (q & ~1)
            sel = 'op_sel:[0,1] op_sel_hi:[1,1]' if q & 1 else 'op_sel_hi:[1,0]'
            for k in range(8):
                self('v_pk_mul_f32 %s, %s, %s %s' % (rng('v', R + 2 * k, 2), rng('v', R + 2 * k, 2), rng('v', rp, 2), sel))
            for b in (0, 8):
                for k in range(4):
                    self('v_cvt_pk_bf16_f32 v%d, v%d, v%d' % (R + b + k, R + b + 2 * k, R + b + 2 * k + 1))
            if pend: stores(pend)
            else: self('s_nop 0')
            for b in (0, 8):
                self('v_permlane16_swap_b32 v%d, v%d' % (R + b, R + b + 2))
                self('v_permlane16_swap_b32 v%d, v%d' % (R + b + 1, R + b + 3))
            self('ds_write_b128 v%d, %s' % (OWX, rng('v', R, 4)))
            self('ds_write_b128 v%d, %s' % (OWY, rng('v', R + 8, 4)))
            self('ds_read_b128 %s, v%d' % (rng('v', R + 4, 4), ORD))
            self('ds_read_b128 %s, v%d offset:1024' % (rng('v', R + 12, 4), ORD))
            pend = (un, R)
        stores(pend)

    def slow(self):
        o = self.opt
        QF, KF, OA, S, PP = 0, 24, 72, 120, 128
        M, Lr, T0, T1, AL, LN, VA0 = 132, 133, 134, 135, 136, 137, 138
        sH, sq, st, sQo, sKo, sLb = 46, 47, 48, 49, 50, 51
        self('s_waitcnt vmcnt(0) lgkmcnt(0)')
        self.lane(LN)
        self('s_sub_u32 s%d, s%d, 18432' % (sLb, sQMAX))
        self.vpat(VA0, LN, T0, T1)
        self('v_add_u32 v%d, s%d, v%d' % (VA0, sLb, VA0))
        for x in range(1, 4): self('v_xor_b32 v%d, %d, v%d' % (VA0 + x, 32 * x, VA0))
        self('s_mov_b32 s%d, 0' % sH)
        self('L_sl_head:')
        self('s_lshr_b32 s%d, s%d, s%d' % (sT0, sBAD, sH))
        self('s_and_b32 s%d, s%d, 1' % (sT0, sT0))
        self('s_cbranch_scc0 L_sl_next')
        self('s_mov_b32 s%d, 0' % sq)
        self('L_sl_q:')
        self('s_mul_i32 s%d, s%d, 147456' % (sQo, sH))
        self('s_mul_i32 s%d, s%d, 36864' % (sT0, sW))
        self('s_add_u32 s%d, s%d, s%d' % (sQo, sQo, sT0))
        self('s_mul_i32 s%d, s%d, 6144' % (sT0, sq))
        self('s_add_u32 s%d, s%d, s%d' % (sQo, sQo, sT0))
        for j in range(6):
            self('buffer_load_dwordx4 %s, v%d, %s, s%d offen offset:%d' % (rng('v', QF + 4 * j, 4), QOFF, rng('s', sQ, 4), sQo, 64 * j))
        for r in range(48): self('v_mov_b32 v%d, 0' % (OA + r))
        self('v_mov_b32 v%d, 0xff800000' % M)
        self('v_mov_b32 v%d, 0' % Lr)
        self('s_mul_i32 s%d, s%d, 196608' % (sKo, sH))
        self('s_mov_b32 s%d, 16' % st)
        self('L_sl_t:')
        for s in range(2):
            self('s_add_u32 s%d, s%d, %d' % (sT0, sKo, s * 6144))
            for j in range(6):
                self('buffer_load_dwordx4 %s, v%d, %s, s%d offen offset:%d' % (rng('v', KF + 24 * s + 4 * j, 4), QOFF, rng('s', sK, 4), sT0, 64 * j))
        for b in range(4):
            self('s_add_u32 s%d, s%d, %d' % (sT0, sKo, b * 3072))
            for t in range(3):
                self('s_add_u32 m0, s%d, %d' % (sLb, b * 3072 + 896 * t))
                self('s_nop 0')
                self('buffer_load_dwordx4 v%d, %s, s%d offen offset:%d lds' % (DMAOFF, rng('s', sV, 4), sT0, 128 * t))
        self('s_waitcnt vmcnt(0)')
        for s in range(2):
            for j in range(6):
                self('v_mfma_f32_16x16x32_bf16 %s, %s, %s, %s' % (rng('v', S + 4 * s, 4), rng('v', KF + 24 * s + 4 * j, 4), rng('v', QF + 4 * j, 4),
                                                                '0' if j == 0 else rng('v', S + 4 * s, 4)))
        for dt in range(12):
            for h in range(2):
                self('ds_read_b64_tr_b16 %s, v%d offset:%d' % (rng('v', KF + 4 * dt + 2 * h, 2), VA0 + (dt & 3), h * 6144 + (dt >> 2) * 1024))
        self('v_max3_f32 v%d, v%d, v%d, v%d' % (T0, S, S + 1, S + 2))
        self('v_max3_f32 v%d, v%d, v%d, v%d' % (T0, T0, S + 3, S + 4))
        self('v_max3_f32 v%d, v%d, v%d, v%d' % (T0, T0, S + 5, S + 6))
        self('v_max3_f32 v%d, v%d, v%d, v%d' % (T0, T0, S + 7, M))
        for swap in ('v_permlane32_swap_b32', 'v_permlane16_swap_b32'):
            self('v_mov_b32 v%d, v%d' % (T1, T0))
            self('s_nop 1')
            self('%s v%d, v%d' % (swap, T1, T0))
            self('v_max_f32 v%d, v%d, v%d' % (T0, T1, T0))
        self('v_sub_f32 v%d, v%d, v%d' % (AL, M, T0))
        self('v_mul_f32 v%d, s%d, v%d' % (AL, sC, AL))
        self('v_exp_f32 v%d, v%d' % (AL, AL))
        self('v_mov_b32 v%d, v%d' % (M, T0))
        for r in range(8): self('v_sub_f32 v%d, v%d, v%d' % (S + r, S + r, M))
        for r in range(8): self('v_mul_f32 v%d, s%d, v%d' % (S + r, sC, S + r))
        for r in range(8): self('v_exp_f32 v%d, v%d' % (S + r, S + r))
        self('v_mul_f32 v%d, v%d, v%d' % (Lr, Lr, AL))
        for r in range(8): self('v_add_f32 v%d, v%d, v%d' % (Lr, Lr, S + r))
        for r in range(4): self('v_cvt_pk_bf16_f32 v%d, v%d, v%d' % (PP + r, S + 2 * r, S + 2 * r + 1))
        for r in range(48): self('v_mul_f32 v%d, v%d, v%d' % (OA + r, OA + r, AL))
        self('s_waitcnt lgkmcnt(0)')
        self('s_nop 1')
        for dt in range(12):
            self('v_mfma_f32_16x16x32_bf16 %s, %s, %s, %s' % (rng('v', OA + 4 * dt, 4), rng('v', KF + 4 * dt, 4), rng('v', PP, 4), rng('v', OA + 4 * dt, 4)))
        self('s_nop 15')
        self('s_add_u32 s%d, s%d, %d' % (sKo, sKo, TILE))
        self('s_sub_u32 s%d, s%d, 1' % (st, st))
        self('s_cmp_lg_u32 s%d, 0' % st)
        self('s_cbranch_scc1 L_sl_t')
        for swap in ('v_permlane32_swap_b32', 'v_permlane16_swap_b32'):
            self('v_mov_b32 v%d, v%d' % (T1, Lr))
            self('s_nop 1')
            self('%s v%d, v%d' % (swap, T1, Lr))
            self('v_add_f32 v%d, v%d, v%d' % (Lr, T1, Lr))
        self('v_rcp_f32 v%d, v%d' % (Lr, Lr))
        self('v_lshrrev_b32 v%d, 4, v%d' % (T0, LN))
        self('v_lshlrev_b32 v%d, 3, v%d' % (T0, T0))
        self('v_sub_u32 v%d, v%d, v%d' % (T0, QOFF, T0))
        for r in range(48): self('v_mul_f32 v%d, v%d, v%d' % (OA + r, OA + r, Lr))
        for dt in range(12):
            self('v_cvt_pk_bf16_f32 v%d, v%d, v%d' % (KF + 2 * dt, OA + 4 * dt, OA + 4 * dt + 1))
            self('v_cvt_pk_bf16_f32 v%d, v%d, v%d' % (KF + 2 * dt + 1, OA + 4 * dt + 2, OA + 4 * dt + 3))
        for dt in range(12):
            self('buffer_store_dwordx2 %s, v%d, %s, s%d offen offset:%d' % (rng('v', KF + 2 * dt, 2), T0, rng('s', sO, 4), sQo, 32 * dt))
        self('s_waitcnt vmcnt(0)')
        self('s_add_u32 s%d, s%d, 1' % (sq, sq))
        self('s_cmp_lt_u32 s%d, 6' % sq)
        self('s_cbranch_scc1 L_sl_q')
        self('L_sl_next:')
        self('s_add_u32 s%d, s%d, 1' % (sH, sH))
        self('s_cmp_lt_u32 s%d, 2' % sH)
        self('s_cbranch_scc1 L_sl_head')

    def build(self):
        o = self.opt
        hdr = open('standalone__mha_softmax__near_ridge.s.ref').read().split('\n')
        for ln in hdr:
            if ln.startswith('; Override'): break
            self(ln)
        self('; @launch grid=(256,1,1) block=(256,1,1) lds=%d' % LDS)
        self('.amdgcn_target "amdgcn-amd-amdhsa--gfx950"')
        self('.text')
        self('.globl %s' % KN)
        self('.p2align 8')
        self('.type %s,@function' % KN)
        self('%s:' % KN)
        self.prologue()
        self.stamp(1)
        self.step(first=True, vmw={6 * q - 1: 54 - 6 * (q + 1) for q in range(6)}, vbar=15, bwait=9)
        self.stamp(2)
        self('s_mov_b32 s%d, 14' % sCNT)
        self('.p2align 6')
        self('L_loop:')
        self.step(loop_label='L_loop')
        self('s_cmp_lg_u32 s%d, 0' % sHEAD)
        self('s_cbranch_scc1 L_epi')
        self.stamp(3)
        self.step(qdirect=True, bwait=25)
        self('L_epi:')
        if o.stamps:
            self('s_cmp_lg_u32 s%d, 0' % sHEAD); self('s_cbranch_scc1 L_st1'); self.stamp(4); self('s_branch L_st2'); self('L_st1:'); self.stamp(8); self('L_st2:')
        self.epilogue()
        self('s_cmp_lg_u32 s%d, 0' % sHEAD)
        self('s_cbranch_scc1 L_done')
        self.stamp(5)
        self('s_mov_b32 s%d, 1' % sHEAD)
        self('s_add_u32 s%d, s%d, 147456' % (sQOFF, sQOFF))
        self('s_waitcnt lgkmcnt(0)')
        self.step(first=True, vmw={17: 55, 23: 49, 29: 43}, bwait=43)
        self.stamp(6)
        self.step(bwait=43)
        self.stamp(7)
        self('s_mov_b32 s%d, 14' % sCNT)
        self('s_branch L_loop')
        self('L_done:')
        if o.stamps:
            self.stamp(9)
            self('s_waitcnt vmcnt(0)')
            self.stamp(10)
            self('s_mov_b32 s58, 402653184'); self('s_mov_b32 s59, 0x20000')
            self('s_lshl_b32 s%d, s2, 2' % sT0); self('s_add_u32 s%d, s%d, s%d' % (sT0, sT0, sW)); self('s_lshl_b32 s%d, s%d, 7' % (sT0, sT0))
            self('v_mov_b32 v0, 0')
            self('s_mov_b64 exec, 1')
            for i in range(22):
                self('v_mov_b32 v1, s%d' % (64 + i))
                self('buffer_store_dword v1, v0, s[56:59], s%d offen offset:%d' % (sT0, 4 * i))
            self('s_mov_b64 exec, -1')
        self('s_cmp_eq_u32 s%d, 0' % sBAD)
        self('s_cbranch_scc1 L_end')
        self.slow()
        self('L_end:')
        self('s_endpgm')
        self('.section .rodata,"a"')
        self('.p2align 6')
        self('.amdhsa_kernel %s' % KN)
        self('  .amdhsa_next_free_vgpr 512')
        self('  .amdhsa_next_free_sgpr 96')
        self('  .amdhsa_accum_offset 256')
        self('  .amdhsa_group_segment_fixed_size 0')
        self('  .amdhsa_kernarg_size 48')
        self('  .amdhsa_user_sgpr_count 2')
        self('  .amdhsa_user_sgpr_kernarg_segment_ptr 1')
        self('  .amdhsa_system_sgpr_workgroup_id_x 1')
        self('.end_amdhsa_kernel')
        return '\n'.join(('    ' + x if not (x.endswith(':') or x.startswith('.') or x.startswith(';') or x.startswith('  .')) else x) for x in self.L) + '\n'

def make(path, **kw):
    o = Opt()
    for k, v in kw.items(): setattr(o, k, v)
    open(path, 'w').write(Gen(o).build())

if __name__ == '__main__':
    v, over = steady_valu(2)
    print('valu overflow slots', over, file=sys.stderr)
    make('m_base.s')
    make('m_stamp.s', stamps=True)
```
